```python
import torch

def _softmax(x, axis=-1):
    return torch.softmax(x, dim=axis)
def _gelu(x):
    return torch.nn.functional.gelu(x, approximate="tanh")
def _silu(x):
    return torch.nn.functional.silu(x)
def _sigmoid(x):
    return torch.sigmoid(x)
def _layernorm(x, axis=-1, eps=1e-5):
    m = x.mean(dim=axis, keepdim=True)
    v = x.var(dim=axis, keepdim=True, unbiased=False)
    return (x - m) / torch.sqrt(v + eps)
def _scatter_add(tgt, idx, src, axis=0):
    return tgt.clone().index_add_(axis, idx, src)
def _segment_sum(src, seg, n):
    out = torch.zeros((n,) + src.shape[1:], dtype=src.dtype)
    return out.index_add_(0, seg, src)
def _pad(x, pw):
    flat = tuple(v for pair in reversed(pw) for v in pair)
    return torch.nn.functional.pad(x, flat)

kernel_name = 'recurrent_scan__linear_kernel_hedgehog__dense_activation_mish__prompt'

def setup_inputs():

    _w = (lambda a: (lambda t: t.to(torch.bfloat16) if t.is_floating_point() else t)(torch.as_tensor(a)))
    def _A_setup():
        B, S, D, H = 1, 2048, 640, 32
        Dh = D // H
        return {
            "x": _w((lambda *s: torch.randn(*s, dtype=torch.bfloat16) * 0.05)(B, S, D)),
            "wqkv": _w((lambda *s: torch.randn(*s, dtype=torch.bfloat16) * 0.4)(D, 3 * D)),
            "w_phi": _w((lambda *s: torch.randn(*s, dtype=torch.bfloat16) * 0.4)(H, Dh, Dh) * (Dh ** -0.5)),
            "wo": _w((lambda *s: torch.randn(*s, dtype=torch.bfloat16) * 0.2)(D, D)),
        }
    _A_in = _A_setup()

    def _B_setup():
        B, S, D, F = 1, 2048, 640, 1728
        return {
            "x": _w((lambda *s: torch.randn(*s, dtype=torch.bfloat16) * 0.05)(B, S, D)),
            "w1": _w((lambda *s: torch.randn(*s, dtype=torch.bfloat16) * 0.4)(D, F) * (D ** -0.5)),
            "b1": _w((lambda *s: torch.randn(*s, dtype=torch.bfloat16) * 0.4)(F)),
            "w2": _w((lambda *s: torch.randn(*s, dtype=torch.bfloat16) * 0.1)(F, D) * (F ** -0.5)),
        }
    _B_in = _B_setup()

    return {
        "A_x": _A_in["x"],
        "A_wqkv": _A_in["wqkv"],
        "A_w_phi": _A_in["w_phi"],
        "A_wo": _A_in["wo"],
        "B_x": _B_in["x"],
        "B_w1": _B_in["w1"],
        "B_b1": _B_in["b1"],
        "B_w2": _B_in["w2"],
    }

def reference(A_x, A_wqkv, A_w_phi, A_wo, B_x, B_w1, B_b1, B_w2):
    def _A_ref(x, wqkv, w_phi, wo):
        B, S, D = x.shape
        H = 32; Dh = D // H
        qkv = (lambda x, *d: x.permute(*d))((x @ wqkv).reshape(B, S, 3, H, Dh), 2, 0, 3, 1, 4)
        q, k, v = qkv[0], qkv[1], qkv[2]
        pq = torch.einsum("bhsd,hdf->bhsf", q, w_phi)
        pk = torch.einsum("bhsd,hdf->bhsf", k, w_phi)
        phi_q = torch.concatenate([_softmax(pq, axis=-1), _softmax(-pq, axis=-1)], axis=-1)
        phi_k = torch.concatenate([_softmax(pk, axis=-1), _softmax(-pk, axis=-1)], axis=-1)
        kv = torch.einsum("bhsf,bhsd->bhfd", phi_k, v)
        z  = torch.einsum("bhsf->bhf", phi_k)
        num = torch.einsum("bhqf,bhfd->bhqd", phi_q, kv)
        den = torch.einsum("bhqf,bhf->bhq", phi_q, z)[..., None] + 1e-6
        o = num / den
        return (lambda x, *d: x.permute(*d))(o, 0, 2, 1, 3).reshape(B, S, D) @ wo

    def _B_ref(x, w1, b1, w2):
        h = torch.einsum("bsd,df->bsf", x, w1) + b1
        sp = torch.log1p(torch.exp(-torch.abs(h))) + torch.where(h > 0, h, torch.zeros_like(h))
        act = h * torch.tanh(sp)
        return torch.einsum("bsf,fd->bsd", act, w2)

    x = A_x
    xn = _layernorm(x, axis=-1)
    s = _A_ref(xn, A_wqkv, A_w_phi, A_wo)
    g = _silu(_B_ref(xn, B_w1, B_b1, B_w2))
    return x + s * g
```

```python
import re

REG_RE = re.compile(r'\b([vas])\[(\d+):(\d+)\]|\b([vas])(\d+)\b|\b(vcc|exec|m0|scc)\b')

def parse_regs(s):
    out = set()
    for m in REG_RE.finditer(s):
        if m.group(1):
            for k in range(int(m.group(2)), int(m.group(3)) + 1):
                out.add(m.group(1) + str(k))
        elif m.group(4):
            out.add(m.group(4) + m.group(5))
        else:
            out.add(m.group(6))
    return out

TRANS = ('v_exp_f32', 'v_log_f32', 'v_rcp_f32', 'v_rsq_f32', 'v_sqrt_f32', 'v_sin_f32', 'v_cos_f32', 'v_rcp_iflag_f32')

class Ins:
    __slots__ = ('text', 'op', 'kind', 'rd', 'wr', 'srcc', 'ab', 'states', 'wide_store_data', 'flags')
    def __init__(self, text):
        self.text = text
        t = text.split(';')[0].strip()
        parts = t.split(None, 1)
        self.op = parts[0]
        ops = parts[1] if len(parts) > 1 else ''
        opl = [o.strip() for o in ops.split(',')] if ops else []
        self.rd = set(); self.wr = set(); self.srcc = set(); self.ab = set()
        self.states = 1; self.wide_store_data = set(); self.flags = set()
        op = self.op
        if op.endswith(':'):
            self.kind = 'label'; self.states = 0; return
        if op.startswith('.'):
            self.kind = 'dir'; self.states = 0; return
        if op == 's_nop':
            self.kind = 'nop'; self.states = int(opl[0], 0) + 1; return
        if op.startswith('v_mfma'):
            self.kind = 'mfma'
            self.wr = parse_regs(opl[0]); self.ab = parse_regs(opl[1]) | parse_regs(opl[2]); self.srcc = parse_regs(opl[3])
            self.rd = self.ab | self.srcc
            self.flags.add('p8' if '32x32' in op else 'p4')
            return
        if op.startswith('v_'):
            self.kind = 'valu'
            if op.startswith('v_cmp'):
                self.wr = parse_regs(opl[0]); self.rd = parse_regs(','.join(opl[1:]))
            elif op.startswith('v_permlane'):
                self.wr = parse_regs(opl[0]) | parse_regs(opl[1]); self.rd = set(self.wr); self.flags.add('permlane')
            elif op in ('v_add_co_u32', 'v_addc_co_u32', 'v_sub_co_u32'):
                self.wr = parse_regs(opl[0]) | parse_regs(opl[1]); self.rd = parse_regs(','.join(opl[2:]))
            else:
                self.wr = parse_regs(opl[0]); self.rd = parse_regs(','.join(opl[1:]))
                if op.startswith(('v_fmac', 'v_dot2c')):
                    self.rd |= self.wr
                if op.startswith('v_cndmask') and len(opl) == 3:
                    self.rd.add('vcc')
            if op.startswith(TRANS): self.flags.add('trans')
            if op.startswith('v_dot'): self.flags.add('dot')
            if 'dpp' in op or 'row_' in ops or 'quad_perm' in ops: self.flags.add('dpp')
            if op.startswith(('v_readfirstlane', 'v_readlane')): self.flags.add('readlane')
            return
        if op.startswith('buffer_') or op.startswith('global_'):
            if op in ('buffer_wbl2', 'buffer_inv'):
                self.kind = 'other'; return
            if ' lds' in (' ' + ops) and op.startswith('buffer_load'):
                self.kind = 'dma'; self.rd = parse_regs(ops) | {'m0'}; return
            if '_load' in op:
                self.kind = 'vload'; self.wr = parse_regs(opl[0]); self.rd = parse_regs(','.join(opl[1:]))
                if 'd16' in op: self.rd |= self.wr
                return
            if '_store' in op:
                self.kind = 'vstore'; self.rd = parse_regs(ops)
                if 'x4' in op or 'x3' in op:
                    self.wide_store_data = parse_regs(opl[0]) if op.startswith('buffer') else parse_regs(opl[1])
                return
            if '_atomic' in op:
                self.kind = 'vstore'; self.rd = parse_regs(ops)
                if 'sc0' in ops:
                    self.wr = parse_regs(opl[0])
                return
        if op.startswith('ds_'):
            if 'read' in op or 'bpermute' in op or 'swizzle' in op or 'permute' in op:
                self.kind = 'dsread'; self.wr = parse_regs(opl[0]); self.rd = parse_regs(','.join(opl[1:]))
                if 'd16' in op: self.rd |= self.wr
            else:
                self.kind = 'dswrite'; self.rd = parse_regs(ops)
            return
        if op.startswith('s_'):
            self.kind = 'salu'
            if op.startswith(('s_cmp', 's_cbranch', 's_branch', 's_waitcnt', 's_barrier', 's_endpgm', 's_sleep', 's_setprio')):
                self.rd = parse_regs(ops)
                if op.startswith(('s_cbranch', 's_branch')): self.kind = 'branch'
            else:
                self.wr = parse_regs(opl[0]) if opl else set(); self.rd = parse_regs(','.join(opl[1:]))
                if 'saveexec' in op: self.wr.add('exec')
            return
        raise ValueError("unknown instr: " + text)

def vonly(s): return {r for r in s if r[0] in 'va' and r != 'vcc'}
def sonly(s): return {r for r in s if (r[0] == 's' and r != 'scc') or r == 'vcc'}

def required(p, c):
    need = 0
    pv = vonly(p.wr); ps = sonly(p.wr)
    if p.kind == 'valu':
        if c.kind == 'mfma' and pv & c.rd:
            need = max(need, 3 if 'dot' in p.flags else 2)
        if c.kind == 'valu':
            if pv & c.rd:
                if 'permlane' in c.flags or 'dpp' in c.flags: need = max(need, 2)
                if 'readlane' in c.flags: need = max(need, 1)
                if 'trans' in p.flags and 'trans' not in c.flags: need = max(need, 1)
            if 'dot' in p.flags and pv & (c.rd | c.wr):
                same = (c.op == p.op)
                if same:
                    opl = c.text.split(None, 1)[1].split(',')
                    ab = parse_regs(','.join(opl[1:3]))
                    if pv & ab: need = max(need, 3)
                else:
                    need = max(need, 3)
            if ps & c.rd:
                need = max(need, 4 if 'readlane' in c.flags else 2)
        if 'dot' in p.flags and c.kind in ('vstore', 'dswrite', 'vload', 'dsread', 'dma') and pv & c.rd:
            need = max(need, 3)
        if c.kind in ('vload', 'vstore', 'dma') and ps & c.rd:
            need = max(need, 5)
        if 'trans' in p.flags and c.kind in ('vstore', 'dswrite', 'vload', 'dsread', 'dma', 'mfma') and pv & c.rd:
            need = max(need, 2)
    if p.kind == 'mfma':
        n = 8 if 'p4' in p.flags else 12
        if c.kind == 'mfma':
            if p.wr & c.ab: need = max(need, n)
            elif p.wr & c.srcc:
                if not (p.wr == c.srcc and p.flags == c.flags): need = max(need, n - 2)
            elif p.wr & c.wr:
                need = max(need, n)
        elif c.kind in ('valu',):
            if p.wr & (c.rd | c.wr): need = max(need, n)
            if p.srcc & vonly(c.wr): need = max(need, 3 if 'p4' in p.flags else 7)
        elif c.kind in ('vload', 'vstore', 'dma', 'dsread', 'dswrite'):
            if p.wr & (c.rd | c.wr): need = max(need, n)
    if p.kind == 'salu' and 'm0' in p.wr and c.kind == 'dma':
        need = max(need, 1)
    if p.kind == 'vstore' and p.wide_store_data and (p.wide_store_data & vonly(c.wr)):
        need = max(need, 2)
    return need

class Asm:
    def __init__(self):
        self.ins = []
    def __call__(self, text):
        for line in text.strip().split('\n'):
            line = line.strip()
            if not line or line.startswith(';'): continue
            self.ins.append(Ins(line))
    def label(self, name):
        self.ins.append(Ins(name + ':'))
        self.ins.append(Ins('s_nop 7')); self.ins.append(Ins('s_nop 3'))
    def rawlabel(self, name):
        self.ins.append(Ins(name + ':'))
    def finish(self):
        out = []
        for c in self.ins:
            if c.kind in ('label', 'dir', 'nop'):
                out.append(c); continue
            dist = 0; need_extra = 0
            for p in reversed(out):
                if dist >= 14: break
                if p.kind in ('label',):
                    pass
                r = required(p, c) if p.kind not in ('label', 'dir', 'nop') else 0
                if r > dist: need_extra = max(need_extra, r - dist)
                dist += p.states
            while need_extra > 0:
                k = min(need_extra, 8)
                out.append(Ins(f's_nop {k-1}')); need_extra -= k
            out.append(c)
        self.ins = out
        return '\n'.join(('    ' + i.text if i.kind != 'label' else i.text) for i in out) + '\n'

class VM:
    def __init__(self, asm): self.q = []; self.asm = asm
    def issue(self, tag, text):
        self.asm(text); self.q.append(tag)
    def wait(self, tag):
        idx = [k for k, t in enumerate(self.q) if t == tag]
        if not idx: return
        n = len(self.q) - 1 - idx[-1]
        assert n <= 63
        self.asm(f's_waitcnt vmcnt({n})')
        self.q = self.q[idx[-1] + 1:]
    def waitall(self):
        self.asm('s_waitcnt vmcnt(0)'); self.q = []

class LG:
    def __init__(self, asm): self.q = []; self.asm = asm
    def issue(self, tag, text):
        self.asm(text); self.q.append(tag)
    def wait(self, tag):
        idx = [k for k, t in enumerate(self.q) if t == tag]
        if not idx: return
        n = len(self.q) - 1 - idx[-1]
        n = min(n, 15)
        self.asm(f's_waitcnt lgkmcnt({n})')
        self.q = self.q[len(self.q) - n:] if n else []
    def waitall(self):
        self.asm('s_waitcnt lgkmcnt(0)'); self.q = []

def kernel_desc(name, vgpr, sgpr=102):
    return f""".section .rodata,"a"
.p2align 6
.amdhsa_kernel {name}
  .amdhsa_next_free_vgpr {vgpr}
  .amdhsa_next_free_sgpr {sgpr}
  .amdhsa_accum_offset {min(256,(vgpr+3)//4*4)}
  .amdhsa_group_segment_fixed_size 0
  .amdhsa_kernarg_size 88
  .amdhsa_user_sgpr_count 2
  .amdhsa_user_sgpr_kernarg_segment_ptr 1
  .amdhsa_system_sgpr_workgroup_id_x 1
  .amdhsa_float_denorm_mode_32 3
.end_amdhsa_kernel
.text
"""
def kernel_head(name):
    return f".globl {name}\n.p2align 8\n.type {name},@function\n{name}:\n"
```

```python
import sys
from asmlib import *

S, D, H, DH, F = 2048, 640, 32, 20, 1728
WS_Q = 0
WS_ACT = WS_Q + S * D * 2
WS_KVP = WS_ACT + S * F * 2
WS_O = WS_KVP + 16 * 32 * 6144
WS_END = WS_O + S * D * 2
OOB = 0x40000000
L2E = 0x3fb8aa3b
NL2E = 0xbfb8aa3b

def srd(a, d, lo, size):
    a(f"s_mov_b32 s{d}, s{lo}\ns_and_b32 s{d+1}, s{lo+1}, 0xffff\ns_mov_b32 s{d+2}, {size}\ns_mov_b32 s{d+3}, 0x20000")

def bf16r(a, dst, src):
    a(f"v_cvt_pk_bf16_f32 v{dst}, v{src}, v{src}\nv_lshlrev_b32 v{dst}, 16, v{dst}")

def allreduce_g(a, regs, op, tmps):
    for r, t in zip(regs, tmps): a(f"v_mov_b32 v{t}, v{r}")
    for r, t in zip(regs, tmps): a(f"v_permlane32_swap_b32 v{r}, v{t}")
    for r, t in zip(regs, tmps): a(f"{op} v{r}, v{r}, v{t}")
    for r, t in zip(regs, tmps): a(f"v_mov_b32 v{t}, v{r}")
    for r, t in zip(regs, tmps): a(f"v_permlane16_swap_b32 v{r}, v{t}")
    for r, t in zip(regs, tmps): a(f"{op} v{r}, v{r}, v{t}")

def softmax_units(a, units, T, sL2E, sNL2E):
    n = len(units)
    tb = [T + 16 * u for u in range(n)]
    for u, (d0, d1, o) in enumerate(units):
        t = tb[u]
        a(f"v_cvt_pk_bf16_f32 v{t+5}, v{d0}, v{d0+1}")
        a(f"v_cvt_pk_bf16_f32 v{t+6}, v{d0+2}, v{d0+3}")
        a(f"v_cvt_pk_bf16_f32 v{t+7}, v{d1}, v{d1}")
    for u, (d0, d1, o) in enumerate(units):
        t = tb[u]
        a(f"v_lshlrev_b32 v{t+0}, 16, v{t+5}\nv_and_b32 v{t+1}, 0xffff0000, v{t+5}")
        a(f"v_lshlrev_b32 v{t+2}, 16, v{t+6}\nv_and_b32 v{t+3}, 0xffff0000, v{t+6}")
        a(f"v_lshlrev_b32 v{t+4}, 16, v{t+7}")
    for u, (d0, d1, o) in enumerate(units):
        t = tb[u]
        a(f"v_max3_f32 v{o}, v{t}, v{t+1}, v{t+2}\nv_min3_f32 v{o+1}, v{t}, v{t+1}, v{t+2}")
        a(f"v_max3_f32 v{o}, v{o}, v{t+3}, v{t+4}\nv_min3_f32 v{o+1}, v{o+1}, v{t+3}, v{t+4}")
    allreduce_g(a, [o for (_, _, o) in units], "v_max_f32", [o + 2 for (_, _, o) in units])
    allreduce_g(a, [o + 1 for (_, _, o) in units], "v_min_f32", [o + 3 for (_, _, o) in units])
    for u, (d0, d1, o) in enumerate(units):
        a(f"v_mul_f32 v{o}, s{sNL2E}, v{o}\nv_mul_f32 v{o+1}, s{sL2E}, v{o+1}")
    for u, (d0, d1, o) in enumerate(units):
        t = tb[u]
        for j in range(5):
            a(f"v_fma_f32 v{t+5+j}, v{t+j}, s{sL2E}, v{o}")
            a(f"v_fma_f32 v{t+10+j}, v{t+j}, s{sNL2E}, v{o+1}")
    for u, (d0, d1, o) in enumerate(units):
        t = tb[u]
        for j in range(10):
            a(f"v_exp_f32 v{t+5+j}, v{t+5+j}")
    for u, (d0, d1, o) in enumerate(units):
        t = tb[u]
        a(f"v_add_f32 v{o}, v{t+5}, v{t+6}\nv_add_f32 v{o+1}, v{t+10}, v{t+11}")
        a(f"v_add_f32 v{o+2}, v{t+7}, v{t+8}\nv_add_f32 v{o+3}, v{t+12}, v{t+13}")
        a(f"v_add_f32 v{o}, v{o}, v{t+9}\nv_add_f32 v{o+1}, v{o+1}, v{t+14}")
        a(f"v_add_f32 v{o}, v{o}, v{o+2}\nv_add_f32 v{o+1}, v{o+1}, v{o+3}")
    allreduce_g(a, [o for (_, _, o) in units] + [o + 1 for (_, _, o) in units], "v_add_f32",
                [o + 2 for (_, _, o) in units] + [o + 3 for (_, _, o) in units])
    for u, (d0, d1, o) in enumerate(units):
        a(f"v_rcp_f32 v{o}, v{o}\nv_rcp_f32 v{o+1}, v{o+1}")
    for u, (d0, d1, o) in enumerate(units):
        t = tb[u]
        for j in range(5):
            a(f"v_mul_f32 v{t+5+j}, v{t+5+j}, v{o}")
            a(f"v_mul_f32 v{t+10+j}, v{t+10+j}, v{o+1}")
    for u, (d0, d1, o) in enumerate(units):
        t = tb[u]
        for j in range(5):
            a(f"v_cvt_pk_bf16_f32 v{o+j}, v{t+5+2*j}, v{t+6+2*j}")
        a(f"v_mov_b32 v{o+5}, 0")

K1_SLOT = 32768
K1_R = 4
K1_IMG = K1_R * K1_SLOT
K1_CS = K1_IMG + 8192
K1_LDS = K1_CS + 4096
PHIK_PITCH = 416
K1_VB = 128 * PHIK_PITCH
K1_JUNK = K1_VB + 128 * 160

def gen_k1_path(a, ffn):
    NT = 7 if ffn else 8
    ACC = 0; XR = 64; WF = 112; NB = 8; PD = 3
    ST = 144; CSA = 152; ONES = 160; XOFF = 161; DOFF = 163; TRB = 167
    LANE = 171; VI = 172; VG = 173; B1 = 174; T = 188
    vm = VM(a); lg = LG(a)
    pitch = 3456 if ffn else 3840
    if ffn:
        srd(a, 8, 44, 640 * 1728 * 2); srd(a, 16, 46, 1728 * 2)
    else:
        srd(a, 8, 40, 640 * 1920 * 2); srd(a, 16, 42, 32 * 400 * 2)
    a(f"""
    s_lshl_b32 s30, s20, 7
    s_lshl_b32 s31, s24, 5
    s_add_u32 s30, s30, s31
    v_add_u32 v{T}, s30, v{VI}
    v_mul_u32_u24 v{T}, 1280, v{T}
    v_lshl_add_u32 v{XOFF}, v{VG}, 4, v{T}
    v_add_u32 v{XOFF+1}, {16*1280}, v{XOFF}
    """)
    def xload(s):
        for aa in range(2):
            for mt in range(2):
                r = XR + (s % 3) * 16 + (aa * 2 + mt) * 4
                vm.issue(('X', s), f"buffer_load_dwordx4 v[{r}:{r+3}], v{XOFF+mt}, s[4:7], 0 offen offset:{(2*s+aa)*64}")
    xload(0)
    for j in range(4):
        d = DOFF + j
        a(f"""
        s_lshl_b32 s30, s23, 6
        s_add_u32 s30, s30, {512*j}
        v_add_u32 v{T}, s30, v{LANE}              ; L
        v_mul_u32_u24 v{T+1}, 2185, v{T}
        v_lshrrev_b32 v{T+1}, 16, v{T+1}          ; p = L/30
        v_mul_u32_u24 v{T+2}, 30, v{T+1}
        v_sub_u32 v{T+2}, v{T}, v{T+2}            ; c
        v_and_b32 v{T+3}, 32, v{T+1}              ; 32a
        v_bfe_u32 v{T+4}, v{T+1}, 2, 2
        v_lshl_add_u32 v{T+3}, v{T+4}, 3, v{T+3}
        v_bfe_u32 v{T+4}, v{T+1}, 4, 1
        v_lshl_add_u32 v{T+3}, v{T+4}, 2, v{T+3}
        v_and_b32 v{T+4}, 3, v{T+1}
        v_add_u32 v{T+3}, v{T+3}, v{T+4}          ; krow
        v_mul_u32_u24 v{T+3}, {pitch}, v{T+3}
        v_cmp_le_u32 vcc, 15, v{T+2}
        v_cndmask_b32 v{T+4}, 0, 15, vcc
        v_sub_u32 v{T+5}, v{T+2}, v{T+4}          ; cc
        """)
        if ffn:
            a(f"""
            v_cndmask_b32 v{T+4}, 0, v{T+20}, vcc      ; half*224
            v_lshl_add_u32 v{T+4}, v{T+5}, 4, v{T+4}
            v_add_u32 v{T+4}, s32, v{T+4}              ; col byte
            v_add_u32 v{d}, v{T+3}, v{T+4}
            v_cmp_le_u32 vcc, 14, v{T+5}
            v_cndmask_b32 v{d}, v{d}, v{T+21}, vcc
            v_cmp_le_u32 vcc, 3456, v{T+4}
            v_cndmask_b32 v{d}, v{d}, v{T+21}, vcc
            """.replace("XX", ""))
        else:
            a(f"""
            v_cndmask_b32 v{T+4}, 0, v{T+20}, vcc      ; half*80
            v_mul_u32_u24 v{T+6}, 52, v{T+5}
            v_lshrrev_b32 v{T+6}, 8, v{T+6}            ; section
            v_mul_u32_u24 v{T+7}, 5, v{T+6}
            v_sub_u32 v{T+7}, v{T+5}, v{T+7}           ; within
            v_lshl_add_u32 v{T+4}, v{T+7}, 4, v{T+4}
            v_add_u32 v{T+4}, s32, v{T+4}
            v_add_u32 v{T+7}, 1, v{T+6}
            v_mul_u32_u24 v{T+7}, 1280, v{T+7}
            v_cmp_eq_u32 vcc, 2, v{T+6}
            v_cndmask_b32 v{T+7}, v{T+7}, 0, vcc
            v_add3_u32 v{d}, v{T+3}, v{T+4}, v{T+7}
            """)
        a(f"""
        v_cmp_le_u32 vcc, 64, v{T+1}
        v_cndmask_b32 v{d}, v{d}, v{T+21}, vcc
        """)
    def dma(s):
        slot = s % K1_R
        a(f"s_mov_b32 s27, {s * 64 * pitch}")
        for j in range(4):
            a(f"s_add_u32 m0, s28, {slot * K1_SLOT + j * 8192}")
            vm.issue(('D', s), f"buffer_load_dwordx4 v{DOFF+j}, s[8:11], s27 offen lds")
    dma(0); xload(1); dma(1); dma(2)
    a(f"""
    v_mov_b32 v{ONES}, 0x3f803f80
    v_lshrrev_b32 v{T}, 2, v{VI}
    v_lshl_add_u32 v{T}, v{VG}, 2, v{T}
    v_mul_u32_u24 v{T}, 480, v{T}
    v_and_b32 v{T+1}, 3, v{VI}
    v_lshl_add_u32 v{T}, v{T+1}, 3, v{T}
    s_mul_i32 s30, s25, 240
    v_add_u32 v{TRB}, s30, v{T}
    v_add_u32 v{TRB+1}, {K1_SLOT}, v{TRB}
    v_add_u32 v{TRB+2}, {2*K1_SLOT}, v{TRB}
    v_add_u32 v{TRB+3}, {3*K1_SLOT}, v{TRB}
    """)
    for k in range(8): a(f"v_mov_b32 v{ST+k}, 0")
    for k in range(8): a(f"v_mov_b32 v{CSA+k}, 0")
    a(f"""
    s_lshl_b32 s33, s23, 9
    s_add_u32 s33, s33, {K1_CS}
    v_lshl_add_u32 v{T}, v{LANE}, 3, s33
    ds_write_b64 v{T}, v[{ST}:{ST+1}]
    """)
    if ffn:
        a(f"""
        s_mul_i32 s30, s25, 224
        s_add_u32 s30, s30, s32
        v_lshl_add_u32 v{T}, v{VG}, 3, s30
        """)
        for t in range(7):
            vm.issue('B1', f"buffer_load_dwordx2 v[{B1+2*t}:{B1+2*t+1}], v{T}, s[16:19], 0 offen offset:{32*t}")
    else:
        tid = T + 30
        a(f"""
        v_lshl_add_u32 v{tid}, s23, 6, v{LANE}
        v_lshrrev_b32 v{T}, 7, v{tid}                 ; hloc
        v_bfe_u32 v{T+1}, v{tid}, 2, 5                ; rho
        v_and_b32 v{T+2}, 3, v{tid}                   ; cq
        v_and_b32 v{T+3}, 1, v{T}                     ; hh
        v_lshlrev_b32 v{T+3}, 2, v{T+3}
        v_sub_u32 v{T+3}, v{T+1}, v{T+3}
        s_lshl_b32 s30, s21, 2
        v_add_u32 v{T+4}, s30, v{T}                   ; head
        v_mul_u32_u24 v{T+4}, 800, v{T+4}
        v_mul_u32_u24 v{T+5}, 40, v{T+3}
        v_add_u32 v{T+4}, v{T+4}, v{T+5}
        v_and_b32 v{T+5}, 1, v{T+2}
        v_mul_u32_u24 v{T+5}, 20, v{T+5}
        v_add_u32 v{T+4}, v{T+4}, v{T+5}              ; base
        v_cmp_gt_u32 vcc, 20, v{T+3}
        v_cndmask_b32 v{T+4}, v{T+21}, v{T+4}, vcc
        v_cmp_gt_u32 vcc, 2, v{T+2}                   ; ft==0
        v_cndmask_b32 v{T+5}, v{T+21}, v{T+4}, vcc
        v_add_u32 v{T+6}, 8, v{T+4}
        v_cndmask_b32 v{T+6}, v{T+6}, v{T+4}, vcc     ; e=0 address
        v_add_u32 v{T+7}, 18, v{T+4}
        v_add_u32 v{T+8}, 10, v{T+4}
        v_cndmask_b32 v{T+7}, v{T+7}, v{T+8}, vcc     ; e=4 address
        """)
        G = T + 10
        for e in range(8):
            if e == 0: vm.issue('PH', f"buffer_load_ushort v{G+e}, v{T+6}, s[16:19], 0 offen")
            elif e == 4: vm.issue('PH', f"buffer_load_ushort v{G+e}, v{T+7}, s[16:19], 0 offen")
            else:
                off = 2 * e if e < 4 else 2 * (e + 1)
                vm.issue('PH', f"buffer_load_ushort v{G+e}, v{T+5}, s[16:19], 0 offen offset:{off}")
        vm.wait('PH')
        for e in range(4):
            a(f"v_lshl_or_b32 v{T+e}, v{G+2*e+1}, 16, v{G+2*e}")
        a(f"v_lshlrev_b32 v{T+4}, 4, v{tid}\nv_add_u32 v{T+4}, {K1_IMG}, v{T+4}\nds_write_b128 v{T+4}, v[{T}:{T+3}]")
    vm.wait(('D', 0))
    a("s_waitcnt lgkmcnt(0)\ns_barrier")
    seq = [(s, aa, t) for s in range(10) for aa in range(2) for t in range(NT)]
    def wreads(n):
        s, aa, t = seq[n]
        r = WF + (n % NB) * 4
        for j2 in range(2):
            off = (32 * aa + 16 * j2) * 480 + 32 * t
            lg.issue(('W', n), f"ds_read_b64_tr_b16 v[{r+2*j2}:{r+2*j2+1}], v{TRB + s % K1_R} offset:{off}")
    for n in range(PD): wreads(n)
    for n, (s, aa, t) in enumerate(seq):
        if aa == 0 and t == 0:
            vm.wait(('X', s))
        if n + PD < len(seq):
            s2_, a2_, t2_ = seq[n + PD]
            wreads(n + PD)
        lg.wait(('W', n))
        r = WF + (n % NB) * 4
        for mt in range(2):
            x = XR + (s % 3) * 16 + (aa * 2 + mt) * 4
            d = ACC + (mt * 8 + t) * 4
            c = "0" if (s == 0 and aa == 0) else f"v[{d}:{d+3}]"
            a(f"v_mfma_f32_16x16x32_bf16 v[{d}:{d+3}], v[{r}:{r+3}], v[{x}:{x+3}], {c}")
        for k in range(4):
            a(f"v_dot2_f32_bf16 v{CSA+t}, v{r+k}, v{ONES}, v{CSA+t}")
        lst = [t] if t < 7 else []
        if t == 6 and NT == 7: lst = [6, 7]
        if t == 7: lst = [7]
        for q in lst:
            mt = q >> 2; k = q & 3
            x = XR + (s % 3) * 16 + (aa * 2 + mt) * 4 + k
            a(f"v_dot2_f32_bf16 v{ST+mt*2+(k&1)}, v{x}, v{ONES}, v{ST+mt*2+(k&1)}")
            a(f"v_dot2_f32_bf16 v{ST+4+mt*2+(k&1)}, v{x}, v{x}, v{ST+4+mt*2+(k&1)}")
        if aa == 0 and t == NT - 1:
            if s + 1 < 10:
                vm.wait(('D', s + 1))
                a("s_barrier")
            if s + 2 < 10: xload(s + 2)
            if s + 3 < 10: dma(s + 3)
    a(f"v_lshl_add_u32 v{T}, v{VI}, 2, s33")
    for t in range(NT):
        a(f"ds_add_f32 v{T}, v{CSA+t} offset:{64*t}")
    a(f"""
    v_add_f32 v{ST}, v{ST}, v{ST+1}
    v_add_f32 v{ST+2}, v{ST+2}, v{ST+3}
    v_add_f32 v{ST+4}, v{ST+4}, v{ST+5}
    v_add_f32 v{ST+6}, v{ST+6}, v{ST+7}
    """)
    allreduce_g(a, [ST, ST + 2, ST + 4, ST + 6], "v_add_f32", [ST + 1, ST + 3, ST + 5, ST + 7])
    RR = XR; NMR = XR + 4
    a("s_mov_b32 s30, 0x3acccccd\ns_mov_b32 s31, 0x3727c5ac")
    for mt in range(2):
        s1 = ST + 2 * mt; s2 = ST + 4 + 2 * mt; t0 = T + 4 + mt * 4
        a(f"""
        v_mul_f32 v{s1}, s30, v{s1}
        v_mul_f32 v{s2}, s30, v{s2}
        v_fma_f32 v{s2}, -v{s1}, v{s1}, v{s2}
        v_max_f32 v{s2}, 0, v{s2}
        """)
        bf16r(a, t0, s1)
        bf16r(a, t0 + 1, s2)
        a(f"v_add_f32 v{t0+1}, s31, v{t0+1}")
        bf16r(a, t0 + 1, t0 + 1)
        a(f"v_sqrt_f32 v{t0+1}, v{t0+1}")
        bf16r(a, t0 + 1, t0 + 1)
        a(f"""
        v_rcp_f32 v{RR+2*mt}, v{t0+1}
        v_mul_f32 v{NMR+2*mt}, v{t0}, v{RR+2*mt}
        v_mov_b32 v{RR+2*mt+1}, v{RR+2*mt}
        v_sub_f32 v{NMR+2*mt}, 0, v{NMR+2*mt}
        v_mov_b32 v{NMR+2*mt+1}, v{NMR+2*mt}
        """)
    CSV = WF
    a(f"s_waitcnt lgkmcnt(0)\nv_lshl_add_u32 v{T}, v{VG}, 4, s33")
    for t in range(NT):
        a(f"ds_read_b128 v[{CSV+4*t}:{CSV+4*t+3}], v{T} offset:{64*t}")
    a("s_mov_b32 s34, 0x3fb8aa3b\ns_mov_b32 s35, 0xbfb8aa3b")
    a(f"""
    s_lshl_b32 s30, s20, 7
    s_lshl_b32 s31, s24, 5
    s_add_u32 s30, s30, s31
    v_add_u32 v{T+1}, s30, v{VI}
    """)
    if ffn:
        vm.wait('B1')
        a("s_waitcnt lgkmcnt(0)")
        OFF = T + 2
        a(f"""
        s_mul_i32 s30, s25, 224
        s_add_u32 s30, s30, s32
        v_lshl_add_u32 v{T+4}, v{VG}, 3, s30     ; + 8g
        v_mul_u32_u24 v{OFF}, 3456, v{T+1}
        v_add_u32 v{OFF}, v{OFF}, v{T+4}
        v_add_u32 v{OFF}, {WS_ACT}, v{OFF}
        v_add_u32 v{OFF+1}, {16*3456}, v{OFF}
        s_mov_b32 s36, 0x42200000
        v_mov_b32 v{T+6}, 2.0
        v_mov_b32 v{T+7}, 2.0
        v_mov_b32 v{T+8}, s34
        v_mov_b32 v{T+9}, s34
        """)
        TWO = T + 6; LE = T + 8; BW = T + 10; W = T + 14
        for t in range(7):
            a(f"""
            v_lshlrev_b32 v{BW}, 16, v{B1+2*t}
            v_and_b32 v{BW+1}, 0xffff0000, v{B1+2*t}
            v_lshlrev_b32 v{BW+2}, 16, v{B1+2*t+1}
            v_and_b32 v{BW+3}, 0xffff0000, v{B1+2*t+1}
            """)
            a(f"s_add_u32 s37, s30, {32*t}\ns_cmp_lt_u32 s37, 3456\ns_cselect_b32 s37, 0, {OOB}")
            for mt in range(2):
                d = ACC + (mt * 8 + t) * 4
                w = W + mt * 16
                for p in range(2):
                    h = w + 2 * p; e = w + 4 + 2 * p; n_ = w + 8 + 2 * p; q = w + 12 + 2 * p
                    a(f"v_pk_fma_f32 v[{h}:{h+1}], v[{CSV+4*t+2*p}:{CSV+4*t+2*p+1}], v[{NMR+2*mt}:{NMR+2*mt+1}], v[{BW+2*p}:{BW+2*p+1}]")
                    a(f"v_pk_fma_f32 v[{h}:{h+1}], v[{d+2*p}:{d+2*p+1}], v[{RR+2*mt}:{RR+2*mt+1}], v[{h}:{h+1}]")
                    a(f"v_pk_mul_f32 v[{e}:{e+1}], v[{h}:{h+1}], v[{LE}:{LE+1}]")
                    a(f"v_min_f32 v{e}, s36, v{e}\nv_min_f32 v{e+1}, s36, v{e+1}")
                    a(f"v_exp_f32 v{e}, v{e}\nv_exp_f32 v{e+1}, v{e+1}")
                for p in range(2):
                    h = w + 2 * p; e = w + 4 + 2 * p; n_ = w + 8 + 2 * p; q = w + 12 + 2 * p
                    a(f"v_pk_add_f32 v[{n_}:{n_+1}], v[{e}:{e+1}], v[{TWO}:{TWO+1}]")
                    a(f"v_pk_mul_f32 v[{n_}:{n_+1}], v[{n_}:{n_+1}], v[{e}:{e+1}]")
                    a(f"v_pk_add_f32 v[{q}:{q+1}], v[{n_}:{n_+1}], v[{TWO}:{TWO+1}]")
                    a(f"v_rcp_f32 v{q}, v{q}\nv_rcp_f32 v{q+1}, v{q+1}")
                for p in range(2):
                    h = w + 2 * p; e = w + 4 + 2 * p; n_ = w + 8 + 2 * p; q = w + 12 + 2 * p
                    a(f"v_pk_mul_f32 v[{n_}:{n_+1}], v[{n_}:{n_+1}], v[{q}:{q+1}]")
                    a(f"v_pk_mul_f32 v[{n_}:{n_+1}], v[{n_}:{n_+1}], v[{h}:{h+1}]")
                    a(f"v_cvt_pk_bf16_f32 v{d+p}, v{n_}, v{n_+1}")
                a(f"buffer_store_dwordx2 v[{d}:{d+1}], v{OFF+mt}, s[12:15], s37 offen offset:{32*t}")
        a("s_endpgm")
        return
    a("s_waitcnt lgkmcnt(0)")
    P = XR + 8
    W = T + 14
    for mt in range(2):
        for t in range(8):
            d = ACC + (mt * 8 + t) * 4
            for p in range(2):
                w = W + ((t * 2 + p) % 4) * 2
                a(f"v_pk_mul_f32 v[{w}:{w+1}], v[{CSV+4*t+2*p}:{CSV+4*t+2*p+1}], v[{NMR+2*mt}:{NMR+2*mt+1}]")
                a(f"v_pk_fma_f32 v[{w}:{w+1}], v[{d+2*p}:{d+2*p+1}], v[{RR+2*mt}:{RR+2*mt+1}], v[{w}:{w+1}]")
                a(f"v_cvt_pk_bf16_f32 v{P+(mt*8+t)*2+p}, v{w}, v{w+1}")
    OFF = T + 2
    a(f"""
    s_mul_i32 s30, s25, 80
    s_add_u32 s30, s30, s32
    v_lshl_add_u32 v{T+4}, v{VG}, 3, s30
    v_mul_u32_u24 v{OFF}, 1280, v{T+1}
    v_add_u32 v{OFF}, v{OFF}, v{T+4}
    v_add_u32 v{OFF+1}, {16*1280}, v{OFF}
    v_cmp_gt_u32 vcc, 2, v{VG}
    v_cndmask_b32 v{OFF+2}, v{T+21}, v{OFF}, vcc
    v_cndmask_b32 v{OFF+3}, v{T+21}, v{OFF+1}, vcc
    """)
    for mt in range(2):
        for t in (5, 6, 7):
            p = P + (mt * 8 + t) * 2
            o = OFF + mt + (2 if t == 7 else 0)
            a(f"buffer_store_dwordx2 v[{p}:{p+1}], v{o}, s[12:15], 0 offen offset:{WS_Q + 32*(t-5)}")
    a("s_barrier")
    VA = T + 6
    a(f"""
    s_lshl_b32 s31, s24, 5
    v_add_u32 v{B1}, s31, v{VI}
    v_mul_u32_u24 v{VA}, 160, v{B1}
    s_mul_i32 s30, s25, 80
    s_add_u32 s30, s30, {K1_VB}
    v_add_u32 v{VA}, s30, v{VA}
    v_lshl_add_u32 v{VA}, v{VG}, 3, v{VA}       ; + 8g
    v_lshlrev_b32 v{T+8}, 3, v{LANE}
    v_add_u32 v{T+8}, {K1_JUNK}, v{T+8}
    v_subrev_u32 v{VA+1}, 16, v{VA}
    v_cmp_le_u32 vcc, 2, v{VG}
    v_cndmask_b32 v{VA+1}, v{T+8}, v{VA+1}, vcc
    v_add_u32 v{T+9}, {16*160}, v{VA+1}
    v_cndmask_b32 v{T+9}, v{T+8}, v{T+9}, vcc
    """)
    for mt in range(2):
        p = P + (mt * 8) * 2
        a(f"ds_write_b64 v{VA+1 if mt == 0 else T+9}, v[{p+4}:{p+5}]")
        a(f"ds_write_b64 v{VA}, v[{p+6}:{p+7}] offset:{mt*2560 + 16}")
        a(f"ds_write_b64 v{VA}, v[{p+8}:{p+9}] offset:{mt*2560 + 48}")
    WPH = CSV
    a(f"""
    v_lshrrev_b32 v{T+10}, 2, v{VI}
    v_lshl_add_u32 v{T+10}, v{VG}, 2, v{T+10}     ; row 4g + (i>>2)
    v_lshlrev_b32 v{T+10}, 6, v{T+10}
    v_and_b32 v{T+11}, 3, v{VI}
    v_lshl_add_u32 v{T+10}, v{T+11}, 3, v{T+10}
    s_lshl_b32 s30, s25, 12
    s_add_u32 s30, s30, {K1_IMG}
    v_add_u32 v{T+10}, s30, v{T+10}
    """)
    for hh in range(2):
        for ft in range(2):
            r = WPH + (hh * 2 + ft) * 4
            for j2 in range(2):
                a(f"ds_read_b64_tr_b16 v[{r+2*j2}:{r+2*j2+1}], v{T+10} offset:{hh*2048 + j2*1024 + ft*32}")
    a("s_waitcnt lgkmcnt(0)")
    DQ = ACC
    OUTU = ACC + 32
    units = []
    for mt in range(2):
        for hh in range(2):
            u = mt * 2 + hh
            b = P + (mt * 8 + hh) * 2
            for ft in range(2):
                d = DQ + u * 8 + ft * 4
                r = WPH + (hh * 2 + ft) * 4
                a(f"v_mfma_f32_16x16x32_bf16 v[{d}:{d+3}], v[{r}:{r+3}], v[{b}:{b+3}], 0")
            units.append((DQ + u * 8, DQ + u * 8 + 4, OUTU + u * 6))
    softmax_units(a, units, 190, 34, 35)
    a(f"""
    v_mul_u32_u24 v{T}, {PHIK_PITCH}, v{B1}
    s_mul_i32 s30, s25, 192
    v_add_u32 v{T}, s30, v{T}
    v_lshl_add_u32 v{T}, v{VG}, 3, v{T}
    """)
    for mt in range(2):
        for hh in range(2):
            o = OUTU + (mt * 2 + hh) * 6
            for ft in range(3):
                a(f"ds_write_b64 v{T}, v[{o+2*ft}:{o+2*ft+1}] offset:{mt*16*PHIK_PITCH + hh*96 + ft*32}")
    a("s_waitcnt lgkmcnt(0)\ns_barrier")
    AA = T; BA = T + 1
    a(f"""
    v_lshrrev_b32 v{T+2}, 2, v{VI}
    v_lshl_add_u32 v{T+2}, v{VG}, 2, v{T+2}     ; row
    v_and_b32 v{T+3}, 3, v{VI}
    v_lshlrev_b32 v{T+3}, 3, v{T+3}
    v_mul_u32_u24 v{AA}, {PHIK_PITCH}, v{T+2}
    s_mul_i32 s30, s24, 96
    v_add3_u32 v{AA}, v{AA}, v{T+3}, s30
    v_mul_u32_u24 v{BA}, 160, v{T+2}
    s_mul_i32 s30, s24, 40
    s_lshl_b32 s31, s25, 5
    s_add_u32 s30, s30, s31
    s_add_u32 s30, s30, {K1_VB}
    v_add3_u32 v{BA}, v{BA}, v{T+3}, s30
    s_lshl_b32 s30, s25, 2
    s_cmp_eq_u32 s25, 1
    s_cselect_b32 s30, 4, 99
    v_cmp_eq_u32 vcc, s30, v{VI}
    """)
    FA = XR; FB = XR + 48
    for ks in range(4):
        for ft in range(3):
            r = FA + (ks * 3 + ft) * 4
            for j2 in range(2):
                a(f"ds_read_b64_tr_b16 v[{r+2*j2}:{r+2*j2+1}], v{AA} offset:{(32*ks+16*j2)*PHIK_PITCH + 32*ft}")
        r = FB + ks * 4
        for j2 in range(2):
            a(f"ds_read_b64_tr_b16 v[{r+2*j2}:{r+2*j2+1}], v{BA} offset:{(32*ks+16*j2)*160}")
    a("s_waitcnt lgkmcnt(0)")
    for k in range(16):
        a(f"v_cndmask_b32 v{FB+k}, v{FB+k}, v{ONES}, vcc")
    for ks in range(4):
        for ft in range(3):
            d = ACC + ft * 4
            c = "0" if ks == 0 else f"v[{d}:{d+3}]"
            a(f"v_mfma_f32_16x16x32_bf16 v[{d}:{d+3}], v[{FA+(ks*3+ft)*4}:{FA+(ks*3+ft)*4+3}], v[{FB+ks*4}:{FB+ks*4+3}], {c}")
    a(f"""
    s_lshl_b32 s30, s20, 5
    s_lshl_b32 s31, s21, 2
    s_add_u32 s30, s30, s31
    s_add_u32 s30, s30, s24
    s_mul_i32 s30, s30, 6
    s_mul_i32 s31, s25, 3
    s_add_u32 s30, s30, s31
    s_lshl_b32 s30, s30, 10
    s_add_u32 s30, s30, {WS_KVP}
    v_lshlrev_b32 v{T}, 4, v{LANE}
    """)
    for ft in range(3):
        a(f"buffer_store_dwordx4 v[{ACC+4*ft}:{ACC+4*ft+3}], v{T}, s[12:15], s30 offen offset:{1024*ft}")
    a("s_endpgm")

def gen_k1():
    a = Asm()
    LANE = 171; VI = 172; VG = 173; T = 188
    a(f"""
    s_cmp_ge_u32 s2, 256
    s_cbranch_scc1 K1_exit
    s_load_dwordx2 s[38:39], s[0:1], 0
    s_load_dwordx4 s[40:43], s[0:1], 8
    s_load_dwordx4 s[44:47], s[0:1], 40
    s_load_dwordx2 s[48:49], s[0:1], 80
    s_and_b32 s30, s2, 7            ; xcd
    s_lshr_b32 s31, s2, 3           ; idx
    s_and_b32 s20, s30, 1
    s_lshl_b32 s20, s20, 3
    s_and_b32 s33, s31, 7
    s_add_u32 s20, s20, s33         ; rt
    s_lshr_b32 s33, s31, 3          ; cl
    s_lshr_b32 s22, s33, 1          ; isffn
    s_and_b32 s33, s33, 1
    s_lshr_b32 s21, s30, 1
    s_lshl_b32 s21, s21, 1
    s_add_u32 s21, s21, s33         ; ct
    v_and_b32 v{LANE}, 63, v0
    v_lshrrev_b32 v{T}, 6, v0
    v_and_b32 v{VI}, 15, v0
    v_bfe_u32 v{VG}, v0, 4, 2
    v_readfirstlane_b32 s23, v{T}
    v_mov_b32 v{T+21}, {OOB}
    s_and_b32 s24, s23, 3           ; tg
    s_lshr_b32 s25, s23, 2          ; ch
    s_lshl_b32 s28, s23, 10
    s_waitcnt lgkmcnt(0)
    """)
    srd(a, 4, 38, S * D * 2)
    srd(a, 12, 48, WS_END)
    a("s_cmp_eq_u32 s22, 1\ns_cbranch_scc1 K1_ffn")
    a(f"s_mul_i32 s32, s21, 160\nv_mov_b32 v{T+20}, 80")
    gen_k1_path(a, False)
    a.label("K1_ffn")
    a(f"s_mul_i32 s32, s21, 448\nv_mov_b32 v{T+20}, 224")
    gen_k1_path(a, True)
    a.rawlabel("K1_exit")
    a("s_endpgm")
    return kernel_head("k1_kernel") + a.finish() + kernel_desc("k1_kernel", 256)

def gen_ko():
    a = Asm()
    vm = VM(a)
    LANE = 1; VI = 2; VG = 3; T = 4
    a(f"""
    s_cmp_ge_u32 s2, 256
    s_cbranch_scc1 KO_exit
    s_load_dwordx2 s[42:43], s[0:1], 16
    s_load_dwordx2 s[48:49], s[0:1], 80
    s_and_b32 s20, s2, 31
    s_lshr_b32 s21, s2, 5
    v_and_b32 v{LANE}, 63, v0
    v_lshrrev_b32 v{T}, 6, v0
    v_and_b32 v{VI}, 15, v0
    v_bfe_u32 v{VG}, v0, 4, 2
    v_readfirstlane_b32 s23, v{T}
    v_mov_b32 v{T+21}, {OOB}
    s_mov_b32 s34, 0x3fb8aa3b
    s_mov_b32 s35, 0xbfb8aa3b
    s_waitcnt lgkmcnt(0)
    """)
    srd(a, 12, 48, WS_END)
    srd(a, 16, 42, 32 * 400 * 2)
    srd(a, 4, 48, WS_Q + S * D * 2)
    a(f"""
    v_subrev_u32 v{T}, 192, v0                ; u
    v_mul_u32_u24 v{T+1}, 205, v{T}
    v_lshrrev_b32 v{T+1}, 12, v{T+1}          ; u/20
    v_mul_u32_u24 v{T+2}, 20, v{T+1}
    v_sub_u32 v{T+2}, v{T}, v{T+2}            ; u%20
    v_mul_u32_u24 v{T+3}, 52, v{T+2}
    v_lshrrev_b32 v{T+3}, 8, v{T+3}           ; g
    v_mul_u32_u24 v{T+4}, 5, v{T+3}
    v_sub_u32 v{T+4}, v{T+2}, v{T+4}          ; i
    v_lshl_add_u32 v{T+4}, v{T+3}, 4, v{T+4}  ; lane
    v_add_u32 v{T+1}, 3, v{T+1}               ; dt*3+ft
    v_lshlrev_b32 v{T+1}, 10, v{T+1}
    v_lshl_add_u32 v{T+1}, v{T+4}, 4, v{T+1}
    v_lshlrev_b32 v{T+2}, 4, v0
    v_cmp_gt_u32 vcc, 192, v0
    v_cndmask_b32 v{T+1}, v{T+1}, v{T+2}, vcc
    v_cmp_gt_u32 vcc, 252, v0
    v_cndmask_b32 v{T+1}, v{T+21}, v{T+1}, vcc
    s_mul_i32 s30, s20, 6144
    s_add_u32 s30, s30, {WS_KVP}
    """)
    PB = 32
    for rt in range(16):
        vm.issue('P', f"buffer_load_dwordx4 v[{PB+4*rt}:{PB+4*rt+3}], v{T+1}, s[12:15], s30 offen")
        a(f"s_add_u32 s30, s30, {32*6144}")
    QF = 96
    a(f"""
    s_lshl_b32 s30, s21, 8
    s_lshl_b32 s31, s23, 6
    s_add_u32 s30, s30, s31
    v_add_u32 v{T+5}, s30, v{VI}              ; token
    v_mul_u32_u24 v{T+6}, 1280, v{T+5}
    s_mul_i32 s30, s20, 40
    v_lshl_add_u32 v{T+7}, v{VG}, 4, s30
    v_add_u32 v{T+7}, v{T+6}, v{T+7}
    """)
    for mt in range(4):
        a(f"s_mov_b32 s31, {WS_Q + mt*16*1280}")
        vm.issue('Q', f"buffer_load_dwordx4 v[{QF+4*mt}:{QF+4*mt+3}], v{T+7}, s[4:7], s31 offen")
    G = 112
    a(f"""
    v_lshrrev_b32 v{T+8}, 2, v{VI}            ; g'
    v_and_b32 v{T+9}, 3, v{VI}                ; r'
    v_mul_u32_u24 v{T+8}, 5, v{T+8}
    v_add_u32 v{T+10}, v{T+8}, v{T+9}         ; f ft0
    v_add_u32 v{T+11}, 4, v{T+8}              ; f ft1
    s_mul_i32 s30, s20, 800
    v_mul_u32_u24 v{T+12}, 320, v{VG}         ; 8g rows * 40 B
    v_add_u32 v{T+12}, s30, v{T+12}
    v_lshl_add_u32 v{T+10}, v{T+10}, 1, v{T+12}
    v_lshl_add_u32 v{T+11}, v{T+11}, 1, v{T+12}
    v_cmp_eq_u32 vcc, 0, v{T+9}
    v_cndmask_b32 v{T+11}, v{T+21}, v{T+11}, vcc
    v_cmp_gt_u32 vcc, 3, v{VG}
    v_cndmask_b32 v{T+12}, v{T+21}, v{T+10}, vcc
    v_cndmask_b32 v{T+13}, v{T+21}, v{T+11}, vcc
    v_cmp_gt_u32 vcc, 2, v{VG}
    v_cndmask_b32 v{T+14}, v{T+21}, v{T+10}, vcc
    v_cndmask_b32 v{T+15}, v{T+21}, v{T+11}, vcc
    """)
    for ft in range(2):
        for j in range(8):
            ad = (T + 12 + ft) if j < 4 else (T + 14 + ft)
            vm.issue('W', f"buffer_load_ushort v{G+ft*8+j}, v{ad}, s[16:19], 0 offen offset:{40*j}")
    vm.wait('P')
    for st in (8, 4, 2, 1):
        for k in range(st):
            for p in range(2):
                x = PB + 4 * k + 2 * p; y = PB + 4 * (k + st) + 2 * p
                a(f"v_pk_add_f32 v[{x}:{x+1}], v[{x}:{x+1}], v[{y}:{y+1}]")
    a(f"""
    v_cvt_pk_bf16_f32 v{PB}, v{PB}, v{PB+1}
    v_cvt_pk_bf16_f32 v{PB+1}, v{PB+2}, v{PB+3}
    v_lshlrev_b32 v{T}, 3, v0
    ds_write_b64 v{T}, v[{PB}:{PB+1}]
    """)
    vm.wait('W')
    WP = 128
    for ft in range(2):
        for k in range(4):
            a(f"v_lshl_or_b32 v{WP+ft*4+k}, v{G+ft*8+2*k+1}, 16, v{G+ft*8+2*k}")
    a("s_waitcnt lgkmcnt(0)\ns_barrier")
    KA = 136
    a(f"""
    v_lshlrev_b32 v{T}, 3, v{LANE}
    v_min_u32 v{T+1}, 4, v{VI}
    v_mul_u32_u24 v{T+2}, 5, v{VG}
    v_add_u32 v{T+1}, v{T+1}, v{T+2}
    v_lshlrev_b32 v{T+1}, 3, v{T+1}
    v_add_u32 v{T+2}, 4, v{T+2}
    v_lshlrev_b32 v{T+2}, 3, v{T+2}
    """)
    for ft in range(3):
        a(f"ds_read_b64 v[{KA+2*ft}:{KA+2*ft+1}], v{T} offset:{512*ft}")
        a(f"ds_read_b64 v[{KA+6+2*ft}:{KA+6+2*ft+1}], v{T+1} offset:{1536+160*ft}")
        a(f"ds_read_b64 v[{KA+12+2*ft}:{KA+12+2*ft+1}], v{T+2} offset:{1536+160*ft}")
    DQ = 32; OUTU = 64
    units = []
    for mt in range(4):
        for ft in range(2):
            d = DQ + mt * 8 + ft * 4
            a(f"v_mfma_f32_16x16x32_bf16 v[{d}:{d+3}], v[{WP+ft*4}:{WP+ft*4+3}], v[{QF+4*mt}:{QF+4*mt+3}], 0")
        units.append((DQ + mt * 8, DQ + mt * 8 + 4, OUTU + mt * 6))
    softmax_units(a, units, 160, 34, 35)
    a("s_waitcnt lgkmcnt(0)")
    ND = 96
    ND = 160
    for mt in range(4):
        o = OUTU + mt * 6
        for tt in range(3):
            d = ND + (mt * 3 + tt) * 4
            a(f"v_mfma_f32_16x16x32_bf16 v[{d}:{d+3}], v[{KA+6*tt}:{KA+6*tt+3}], v[{o}:{o+3}], 0")
        for tt in range(3):
            d = ND + (mt * 3 + tt) * 4
            a(f"v_mfma_f32_16x16x16_bf16 v[{d}:{d+3}], v[{KA+6*tt+4}:{KA+6*tt+5}], v[{o+4}:{o+5}], v[{d}:{d+3}]")
    a(f"""
    s_mov_b32 s30, 0x358637bd
    s_mul_i32 s31, s20, 40
    v_lshl_add_u32 v{T+8}, v{VG}, 3, s31
    v_add_u32 v{T+8}, v{T+6}, v{T+8}
    v_add_u32 v{T+9}, 32, v{T+8}
    v_cmp_eq_u32 vcc, 0, v{VG}
    v_cndmask_b32 v{T+9}, v{T+21}, v{T+9}, vcc
    """)
    for mt in range(4):
        d = ND + mt * 12
        t = 32 + mt * 8
        bf16r(a, t, d + 8)
        a(f"v_add_f32 v{t}, s30, v{t}")
        bf16r(a, t, t)
        a(f"v_rcp_f32 v{t}, v{t}")
        a(f"v_cvt_pk_bf16_f32 v{t+2}, v{d}, v{d+1}\nv_cvt_pk_bf16_f32 v{t+3}, v{d+2}, v{d+3}")
        a(f"v_cvt_pk_bf16_f32 v{t+4}, v{d+4}, v{d+5}\nv_cvt_pk_bf16_f32 v{t+5}, v{d+6}, v{d+7}")
        for k in range(4):
            a(f"v_lshlrev_b32 v{d+2*k}, 16, v{t+2+k}\nv_and_b32 v{d+2*k+1}, 0xffff0000, v{t+2+k}")
        for k in range(8):
            a(f"v_mul_f32 v{d+k}, v{d+k}, v{t}")
        for k in range(4):
            a(f"v_cvt_pk_bf16_f32 v{t+2+k}, v{d+2*k}, v{d+2*k+1}")
        a(f"s_mov_b32 s31, {WS_O + mt*16*1280}")
        a(f"buffer_store_dwordx2 v[{t+2}:{t+3}], v{T+8}, s[12:15], s31 offen")
        a(f"buffer_store_dwordx2 v[{t+4}:{t+5}], v{T+9}, s[12:15], s31 offen")
    a.rawlabel("KO_exit")
    a("s_endpgm")
    return kernel_head("ko_kernel") + a.finish() + kernel_desc("ko_kernel", 256)

K2_D = 6
K2_RING = K2_D * 5120
K2_LDS = 4 * K2_RING

def gen_k2_path(a, nsteps, tagp):
    ACC = 0; XR = 80; WF = 176; NB = 5; PD = 2
    XOFF = 216; DOFF = 220; TRB = 225
    vm = VM(a); lg = LG(a)
    def loads(s):
        slot = s % K2_D
        a(f"s_add_u32 s27, s26, {s * 32 * 1280}")
        for j in range(5):
            a(f"s_add_u32 m0, s28, {slot * 5120 + j * 1024}")
            vm.issue(('L', s), f"buffer_load_dwordx4 v{DOFF+j}, s[8:11], s27 offen lds")
        for mt in range(4):
            r = XR + slot * 16 + mt * 4
            vm.issue(('L', s), f"buffer_load_dwordx4 v[{r}:{r+3}], v{XOFF+mt}, s[4:7], 0 offen offset:{64*s}")
    for s in range(K2_D - 1): loads(s)
    seq = [(s, t) for s in range(nsteps) for t in range(5)]
    NBUF = 8
    def wreads(n):
        s, t = seq[n]
        r = WF + (n % NBUF) * 4
        for j2 in range(2):
            lg.issue(('W', n), f"ds_read_b64_tr_b16 v[{r+2*j2}:{r+2*j2+1}], v{TRB} offset:{(s % K2_D)*5120 + 16*j2*160 + 32*t}")
    vm.wait(('L', 0))
    for n in range(PD): wreads(n)
    for n, (s, t) in enumerate(seq):
        if t == 0 and s + K2_D - 1 < nsteps:
            loads(s + K2_D - 1)
        if n + PD < len(seq):
            s2_, t2_ = seq[n + PD]
            if t2_ == 0: vm.wait(('L', s2_))
            wreads(n + PD)
        lg.wait(('W', n))
        r = WF + (n % NBUF) * 4
        for mt in range(4):
            x = XR + (s % K2_D) * 16 + mt * 4
            d = ACC + (mt * 5 + t) * 4
            c = "0" if s == 0 else f"v[{d}:{d+3}]"
            a(f"v_mfma_f32_16x16x32_bf16 v[{d}:{d+3}], v[{r}:{r+3}], v[{x}:{x+3}], {c}")

def gen_k2():
    a = Asm()
    ACC = 0; XR = 80; WF = 176
    XOFF = 216; DOFF = 220; TRB = 225
    LANE = 226; VI = 227; VG = 228; T = 230; XV = 244
    a(f"""
    s_cmp_ge_u32 s2, 256
    s_cbranch_scc1 K2_exit
    s_load_dwordx2 s[38:39], s[0:1], 0
    s_load_dwordx2 s[40:41], s[0:1], 24
    s_load_dwordx2 s[42:43], s[0:1], 56
    s_load_dwordx2 s[44:45], s[0:1], 64
    s_load_dwordx2 s[48:49], s[0:1], 80
    s_and_b32 s30, s2, 7
    s_lshr_b32 s31, s2, 3
    s_lshr_b32 s20, s30, 1
    s_lshl_b32 s20, s20, 3
    s_and_b32 s33, s31, 7
    s_add_u32 s20, s20, s33
    s_and_b32 s21, s30, 1
    s_lshl_b32 s21, s21, 2
    s_lshr_b32 s33, s31, 3
    s_add_u32 s21, s21, s33
    v_and_b32 v{LANE}, 63, v0
    v_lshrrev_b32 v{T}, 6, v0
    v_and_b32 v{VI}, 15, v0
    v_bfe_u32 v{VG}, v0, 4, 2
    v_readfirstlane_b32 s23, v{T}
    s_mul_i32 s28, s23, {K2_RING}
    s_waitcnt lgkmcnt(0)
    """)
    srd(a, 4, 48, WS_END)
    srd(a, 12, 38, S * D * 2)
    srd(a, 16, 44, S * D * 2)
    a(f"""
    s_mov_b32 s10, {1728*640*2}
    s_movk_i32 s29, 3456
    s_mul_i32 s30, s23, 1152
    s_add_u32 s30, s30, {WS_ACT}
    s_mul_i32 s26, s23, {576*1280}
    s_cmp_eq_u32 s23, 3
    s_cselect_b32 s8, s40, s42
    s_cselect_b32 s9, s41, s43
    s_cselect_b32 s10, {640*640*2}, s10
    s_cselect_b32 s29, 1280, s29             ; X pitch
    s_cselect_b32 s30, {WS_O}, s30           ; X base
    s_cselect_b32 s26, 0, s26
    s_and_b32 s9, s9, 0xffff
    s_mov_b32 s11, 0x20000
    s_lshl_b32 s31, s20, 6
    v_add_u32 v{T}, s31, v{VI}
    v_mul_lo_u32 v{T+1}, v{T}, s29
    v_lshl_add_u32 v{T+1}, v{VG}, 4, v{T+1}
    v_add_u32 v{XOFF}, s30, v{T+1}
    s_lshl_b32 s31, s29, 4
    v_add_u32 v{XOFF+1}, s31, v{XOFF}
    v_add_u32 v{XOFF+2}, s31, v{XOFF+1}
    v_add_u32 v{XOFF+3}, s31, v{XOFF+2}
    s_mul_i32 s32, s21, 160
    """)
    for j in range(5):
        a(f"""
        v_add_u32 v{T+1}, {64*j}, v{LANE}         ; L
        v_mul_u32_u24 v{T+2}, 205, v{T+1}
        v_lshrrev_b32 v{T+2}, 11, v{T+2}          ; p = L/10
        v_mul_u32_u24 v{T+3}, 10, v{T+2}
        v_sub_u32 v{T+3}, v{T+1}, v{T+3}          ; c
        v_bfe_u32 v{T+4}, v{T+2}, 2, 2
        v_lshlrev_b32 v{T+4}, 3, v{T+4}
        v_bfe_u32 v{T+5}, v{T+2}, 4, 1
        v_lshl_add_u32 v{T+4}, v{T+5}, 2, v{T+4}
        v_and_b32 v{T+5}, 3, v{T+2}
        v_add_u32 v{T+4}, v{T+4}, v{T+5}          ; krow
        v_mul_u32_u24 v{T+4}, 1280, v{T+4}
        v_lshl_add_u32 v{T+4}, v{T+3}, 4, v{T+4}
        v_add_u32 v{DOFF+j}, s32, v{T+4}
        """)
    a(f"""
    v_lshrrev_b32 v{T+1}, 2, v{VI}
    v_lshl_add_u32 v{T+1}, v{VG}, 2, v{T+1}
    v_mul_u32_u24 v{T+1}, 160, v{T+1}
    v_and_b32 v{T+2}, 3, v{VI}
    v_lshl_add_u32 v{T+1}, v{T+2}, 3, v{T+1}
    v_add_u32 v{TRB}, s28, v{T+1}
    s_lshl_b32 s31, s23, 4
    v_add_u32 v{T}, s31, v{T}
    v_mul_u32_u24 v{T}, 1280, v{T}
    v_lshl_add_u32 v{T+1}, v{VG}, 3, s32
    v_add_u32 v{T}, v{T}, v{T+1}
    """)
    for t in range(5):
        a(f"buffer_load_dwordx2 v[{XV+2*t}:{XV+2*t+1}], v{T}, s[12:15], 0 offen offset:{32*t}")
    a("s_waitcnt vmcnt(0)")
    a("s_cmp_eq_u32 s23, 3\ns_cbranch_scc1 K2_w3")
    gen_k2_path(a, 18, 'a')
    a("s_branch K2_red")
    a.label("K2_w3")
    gen_k2_path(a, 20, 'b')
    a.label("K2_red")
    a(f"""
    s_barrier
    s_mul_i32 s30, s23, 20480
    v_lshl_add_u32 v{T+1}, v{LANE}, 4, s30
    """)
    for k in range(20):
        a(f"ds_write_b128 v{T+1}, v[{ACC+4*k}:{ACC+4*k+3}] offset:{1024*k}")
    a(f"""
    s_waitcnt lgkmcnt(0)
    s_barrier
    s_mul_i32 s30, s23, 5120
    v_lshl_add_u32 v{T+1}, v{LANE}, 4, s30
    v_add_u32 v{T+2}, 40960, v{T+1}
    """)
    R = 0
    for src in range(4):
        for t in range(5):
            r = R + (src * 5 + t) * 4
            base = T + 1 if src < 2 else T + 2
            a(f"ds_read_b128 v[{r}:{r+3}], v{base} offset:{(src%2)*20480 + 1024*t}")
    a("s_waitcnt lgkmcnt(0)\ns_mov_b32 s35, 0xbfb8aa3b")
    W = 80
    for t in range(5):
        b = R + t * 4; s_ = R + (15 + t) * 4
        for p in range(2):
            a(f"v_pk_add_f32 v[{b+2*p}:{b+2*p+1}], v[{b+2*p}:{b+2*p+1}], v[{b+20+2*p}:{b+20+2*p+1}]")
            a(f"v_pk_add_f32 v[{b+2*p}:{b+2*p+1}], v[{b+2*p}:{b+2*p+1}], v[{b+40+2*p}:{b+40+2*p+1}]")
        w = W + t * 16
        a(f"v_cvt_pk_bf16_f32 v{w}, v{b}, v{b+1}\nv_cvt_pk_bf16_f32 v{w+1}, v{b+2}, v{b+3}")
        a(f"v_cvt_pk_bf16_f32 v{w+2}, v{s_}, v{s_+1}\nv_cvt_pk_bf16_f32 v{w+3}, v{s_+2}, v{s_+3}")
        for k in range(2):
            a(f"v_lshlrev_b32 v{b+2*k}, 16, v{w+k}\nv_and_b32 v{b+2*k+1}, 0xffff0000, v{w+k}")
            a(f"v_lshlrev_b32 v{s_+2*k}, 16, v{w+2+k}\nv_and_b32 v{s_+2*k+1}, 0xffff0000, v{w+2+k}")
        for k in range(4):
            a(f"v_mul_f32 v{w+4+k}, s35, v{b+k}")
        for k in range(4):
            a(f"v_exp_f32 v{w+4+k}, v{w+4+k}")
        for k in range(4):
            a(f"v_add_f32 v{w+4+k}, 1.0, v{w+4+k}")
        for k in range(4):
            a(f"v_rcp_f32 v{w+4+k}, v{w+4+k}")
        for k in range(4):
            a(f"v_mul_f32 v{w+4+k}, v{w+4+k}, v{b+k}")
        a(f"v_cvt_pk_bf16_f32 v{w}, v{w+4}, v{w+5}\nv_cvt_pk_bf16_f32 v{w+1}, v{w+6}, v{w+7}")
        for k in range(2):
            a(f"v_lshlrev_b32 v{w+4+2*k}, 16, v{w+k}\nv_and_b32 v{w+5+2*k}, 0xffff0000, v{w+k}")
        for k in range(4):
            a(f"v_mul_f32 v{w+4+k}, v{w+4+k}, v{s_+k}")
        a(f"v_cvt_pk_bf16_f32 v{w}, v{w+4}, v{w+5}\nv_cvt_pk_bf16_f32 v{w+1}, v{w+6}, v{w+7}")
        for k in range(2):
            a(f"v_lshlrev_b32 v{w+4+2*k}, 16, v{w+k}\nv_and_b32 v{w+5+2*k}, 0xffff0000, v{w+k}")
            a(f"v_lshlrev_b32 v{w+8+2*k}, 16, v{XV+2*t+k}\nv_and_b32 v{w+9+2*k}, 0xffff0000, v{XV+2*t+k}")
        for k in range(4):
            a(f"v_add_f32 v{w+4+k}, v{w+4+k}, v{w+8+k}")
        a(f"v_cvt_pk_bf16_f32 v{w}, v{w+4}, v{w+5}\nv_cvt_pk_bf16_f32 v{w+1}, v{w+6}, v{w+7}")
        a(f"buffer_store_dwordx2 v[{w}:{w+1}], v{T}, s[16:19], 0 offen offset:{32*t}")
    a.rawlabel("K2_exit")
    a("s_endpgm")
    return kernel_head("k2_kernel") + a.finish() + kernel_desc("k2_kernel", 256)

def main(out):
    hdr = open("recurrent_scan__linear_kernel_hedgehog__dense_activation_mish__prompt.s.ref").read().split("; Override")[0]
    s = hdr
    s += f"; @launch kernel=k1_kernel grid=(256,1,1) block=(512,1,1) lds={K1_LDS}\n"
    s += f"; @launch kernel=ko_kernel grid=(256,1,1) block=(256,1,1) lds=2048\n"
    s += f"; @launch kernel=k2_kernel grid=(256,1,1) block=(256,1,1) lds={K2_LDS}\n"
    s += '.amdgcn_target "amdgcn-amd-amdhsa--gfx950"\n.text\n'
    s += gen_k1() + gen_ko() + gen_k2()
    open(out, "w").write(s)

if __name__ == "__main__":
    assert all((L * 2185) >> 16 == L // 30 for L in range(2048 + 64))
    assert all((c * 52) >> 8 == c // 5 for c in range(20))
    assert all((u * 205) >> 12 == u // 20 for u in range(64))
    assert all((L * 205) >> 11 == L // 10 for L in range(320))
    main(sys.argv[1] if len(sys.argv) > 1 else "k.s")
```
